```python
import torch

def _softmax(x, axis=-1):
    return torch.softmax(x, dim=axis)
def _gelu(x):
    return torch.nn.functional.gelu(x, approximate="tanh")
def _silu(x):
    return torch.nn.functional.silu(x)
def _sigmoid(x):
    return torch.sigmoid(x)
def _layernorm(x, axis=-1, eps=1e-5):
    m = x.mean(dim=axis, keepdim=True)
    v = x.var(dim=axis, keepdim=True, unbiased=False)
    return (x - m) / torch.sqrt(v + eps)
def _scatter_add(tgt, idx, src, axis=0):
    return tgt.clone().index_add_(axis, idx, src)
def _segment_sum(src, seg, n):
    out = torch.zeros((n,) + src.shape[1:], dtype=src.dtype)
    return out.index_add_(0, seg, src)
def _pad(x, pw):
    flat = tuple(v for pair in reversed(pw) for v in pair)
    return torch.nn.functional.pad(x, flat)

kernel_name = 'gated_mix__ssm_conv_h3__grouped_kv_mqa__prompt'

def setup_inputs():

    _w = (lambda a: (lambda t: t.to(torch.bfloat16) if t.is_floating_point() else t)(torch.as_tensor(a)))
    def _A_setup():
        B, S, D = 1, 2048, 640
        ks = 4
        return {
            "q": _w((lambda *s: torch.randn(*s, dtype=torch.bfloat16) * 0.05)(B, S, D)),
            "k": _w((lambda *s: torch.randn(*s, dtype=torch.bfloat16) * 0.2)(B, S, D)),
            "v": _w((lambda *s: torch.randn(*s, dtype=torch.bfloat16) * 0.2)(B, S, D)),
            "shift_k": _w((lambda *s: torch.randn(*s, dtype=torch.bfloat16) * 0.2)(D, ks) * 0.5),
            "ssm_k": _w((lambda *s: torch.randn(*s, dtype=torch.bfloat16) * 0.8)(D, S) * (1.0 / S ** 0.5)),
            "ssm_D": _w((lambda *s: torch.randn(*s, dtype=torch.bfloat16) * 0.2)(D)),
        }
    _A_in = _A_setup()

    def _B_setup():
        B, S, D, H = 1, 2048, 640, 32
        Dh = D // H
        return {
            "x": _w((lambda *s: torch.randn(*s, dtype=torch.bfloat16) * 0.05)(B, S, D)),
            "wq": _w((lambda *s: torch.randn(*s, dtype=torch.bfloat16) * 0.8)(D, H * Dh)),
            "wk": _w((lambda *s: torch.randn(*s, dtype=torch.bfloat16) * 0.8)(D, Dh)),
            "wv": _w((lambda *s: torch.randn(*s, dtype=torch.bfloat16) * 0.05)(D, Dh)),
            "wo": _w((lambda *s: torch.randn(*s, dtype=torch.bfloat16) * 0.05)(H * Dh, D)),
        }
    _B_in = _B_setup()

    return {
        "A_q": _A_in["q"],
        "A_k": _A_in["k"],
        "A_v": _A_in["v"],
        "A_shift_k": _A_in["shift_k"],
        "A_ssm_k": _A_in["ssm_k"],
        "A_ssm_D": _A_in["ssm_D"],
        "B_x": _B_in["x"],
        "B_wq": _B_in["wq"],
        "B_wk": _B_in["wk"],
        "B_wv": _B_in["wv"],
        "B_wo": _B_in["wo"],
        "gate_w": _w((lambda *s: torch.randn(*s, dtype=torch.bfloat16) * 0.05)(640) * 16.0),
    }

def reference(A_q, A_k, A_v, A_shift_k, A_ssm_k, A_ssm_D, B_x, B_wq, B_wk, B_wv, B_wo, gate_w):
    def _A_ref(q, k, v, shift_k, ssm_k, ssm_D):
        B, S, D = q.shape
        ks = shift_k.shape[-1]
        k_pad = _pad(k, ((0, 0), (ks - 1, 0), (0, 0)))
        k_shift = torch.zeros_like(k)
        for t in range(ks):
            k_shift = k_shift + k_pad[:, t:t + S, :] * shift_k[:, ks - 1 - t][None, None, :]
        kv = k_shift * v
        L = 2 * S
        kv_pad = _pad(kv, ((0, 0), (0, S), (0, 0)))
        kf_pad = _pad(ssm_k, ((0, 0), (0, S)))
        kv_f = (lambda x, axes=(-2,-1): torch.fft.rfft2(x.float(), dim=axes))(kv_pad[:, None, :, :], axes=(1, 2))
        kf_f = (lambda x, axes=(-2,-1): torch.fft.rfft2(x.float(), dim=axes))(kf_pad[:, None, :], axes=(1, 2))
        kf_f = (lambda x, *d: x.permute(*d))(kf_f, 1, 2, 0)
        y_f = kv_f * kf_f[None, :, :, :]
        y = (lambda x, s, axes=(-2,-1): torch.fft.irfft2(x, s=s, dim=axes).to(torch.bfloat16))(y_f, (1, L), axes=(1, 2))[:, 0, :S, :]
        y = y + kv * ssm_D[None, None, :]
        return q * y

    def _B_ref(x, wq, wk, wv, wo):
        B, S, D = x.shape
        H = 32
        Dh = D // H
        q = (lambda x, *d: x.permute(*d))((x @ wq).reshape(B, S, H, Dh), 0, 2, 1, 3)
        k = x @ wk
        v = x @ wv
        scores = torch.einsum("bhqd,bkd->bhqk", q, k) * (Dh ** -0.5)
        p = _softmax(scores, axis=-1)
        o = torch.einsum("bhqk,bkd->bhqd", p, v)
        return (lambda x, *d: x.permute(*d))(o, 0, 2, 1, 3).reshape(B, S, H * Dh) @ wo

    x = A_q
    g = _sigmoid((x * gate_w).sum(-1, keepdims=True))
    a = _A_ref(x, A_k, A_v, A_shift_k, A_ssm_k, A_ssm_D)
    b = _B_ref(x, B_wq, B_wk, B_wv, B_wo)
    return g * a + (1 - g) * b
```

```python
import sys
kernels = []
def kern(name, body_fn, iters=2000, roles=None, pre="", post="", vgpr=256, role_shift=2):
    s = []
    s.append(f".globl {name}\n.p2align 8\n.type {name},@function\n{name}:")
    s.append("  s_load_dwordx4 s[4:7], s[0:1], 0")
    s.append("  v_lshrrev_b32 v1, 6, v0")
    s.append("  s_nop 1")
    s.append("  v_readfirstlane_b32 s20, v1")
    s.append("  v_and_b32 v2, 63, v0")
    s.append("  v_cvt_f32_u32 v3, v2")
    s.append("  v_mul_f32 v3, 0x3c000000, v3")
    for r in range(4, min(vgpr,250)):
        s.append(f"  v_mov_b32 v{r}, v3")
    s.append("  s_waitcnt lgkmcnt(0)")
    s.append(pre)
    s.append("  s_waitcnt vmcnt(0) lgkmcnt(0)")
    s.append("  s_barrier")
    s.append(f"  s_mov_b32 s8, {iters}")
    s.append(f"  s_lshr_b32 s21, s20, {role_shift}")
    s.append("  s_memtime s[10:11]")
    s.append("  s_memrealtime s[16:17]")
    s.append("  s_waitcnt lgkmcnt(0)")
    bodies = roles if roles else [body_fn]
    for i, b in enumerate(bodies):
        if i + 1 < len(bodies):
            s.append(f"  s_cmp_lg_u32 s21, {i}")
            s.append(f"  s_cbranch_scc1 {name}_skip{i}")
        s.append(".p2align 6")
        s.append(f"{name}_loop{i}:")
        s.append(b)
        s.append("  s_sub_u32 s8, s8, 1")
        s.append("  s_cmp_lg_u32 s8, 0")
        s.append(f"  s_cbranch_scc1 {name}_loop{i}")
        s.append(f"  s_branch {name}_done")
        s.append(f"{name}_skip{i}:")
    s.append(f"{name}_done:")
    s.append("  s_memtime s[12:13]")
    s.append("  s_memrealtime s[18:19]")
    s.append("  s_getreg_b32 s22, hwreg(HW_REG_HW_ID)")
    s.append("  s_getreg_b32 s23, hwreg(HW_REG_XCC_ID)")
    s.append("  s_waitcnt lgkmcnt(0)")
    s.append("  s_sub_u32 s12, s12, s10")
    s.append("  s_sub_u32 s18, s18, s16")
    s.append(f"  s_lshl_b32 s14, s2, 4")
    s.append("  s_add_u32 s14, s14, s20")
    s.append("  s_lshl_b32 s14, s14, 4")
    s.append("  v_mov_b32 v1, s14")
    s.append("  v_mov_b32 v4, s12")
    s.append("  v_mov_b32 v5, s18")
    s.append("  v_mov_b32 v6, s22")
    s.append("  v_mov_b32 v7, s23")
    s.append(post)
    s.append("  global_store_dwordx4 v1, v[4:7], s[6:7]")
    s.append("  s_endpgm")
    kernels.append((name, "\n".join(s), 0, vgpr))

def emit(fn):
    out = ['.amdgcn_target "amdgcn-amd-amdhsa--gfx950"', ".text"]
    for n, s, lds, vgpr in kernels:
        out.append(s)
    out.append('.section .rodata,"a"')
    for n, s, lds, vgpr in kernels:
        acc = min(vgpr,256)
        out.append(f""".p2align 6
.amdhsa_kernel {n}
  .amdhsa_next_free_vgpr {vgpr}
  .amdhsa_next_free_sgpr 64
  .amdhsa_accum_offset {acc}
  .amdhsa_group_segment_fixed_size 0
  .amdhsa_kernarg_size 16
  .amdhsa_user_sgpr_count 2
  .amdhsa_user_sgpr_kernarg_segment_ptr 1
  .amdhsa_system_sgpr_workgroup_id_x 1
.end_amdhsa_kernel""")
    out.append(".amdgpu_metadata\n---\namdhsa.version: [1, 2]\namdhsa.kernels:")
    for n, s, lds, vgpr in kernels:
        out.append(f"""  - .name: {n}
    .symbol: {n}.kd
    .kernarg_segment_size: 16
    .kernarg_segment_align: 8
    .group_segment_fixed_size: 0
    .private_segment_fixed_size: 0
    .wavefront_size: 64
    .sgpr_count: 64
    .vgpr_count: {vgpr}
    .max_flat_workgroup_size: 1024
    .args:
      - {{.name: a, .size: 8, .offset: 0, .value_kind: global_buffer, .address_space: global}}
      - {{.name: b, .size: 8, .offset: 8, .value_kind: global_buffer, .address_space: global}}""")
    out.append("...\n.end_amdgpu_metadata")
    open(fn, "w").write("\n".join(out) + "\n")
```

```python
import gen
from gen import emit
def rep(s, n): return "\n".join([s]*n)
fill = """
  v_lshlrev_b32 v8, 2, v0
  v_lshlrev_b32 v9, 1, v0            ; 2*tid
  s_mov_b32 s30, 32
fill_LOOP_%s:
  v_add_u32 v10, 1, v9
  v_lshlrev_b32 v10, 16, v10
  v_or_b32 v10, v10, v9
  ds_write_b32 v8, v10
  v_add_u32 v8, 1024, v8
  v_add_u32 v9, 512, v9
  s_sub_u32 s30, s30, 1
  s_cmp_lg_u32 s30, 0
  s_cbranch_scc1 fill_LOOP_%s
  s_waitcnt lgkmcnt(0)
  s_barrier
"""
def addr(stride, off=0, hi=16):
    return f"""
  v_and_b32 v12, 31, v2
  v_mul_u32_u24 v12, {stride}, v12
  v_lshrrev_b32 v13, 5, v2
  v_mul_u32_u24 v13, {hi}, v13
  v_add_u32 v12, v12, v13
  v_add_u32 v12, {off}, v12
"""
names=[]
def K(name, instr, stride, off=0, hi=16, n=16, nreg=4):
    body = "\n".join(instr.format(d=16+nreg*(i%16), d1=16+nreg*(i%16)+nreg-1, o=(i%16)*64) for i in range(n)) + "\n  s_waitcnt lgkmcnt(0)"
    pre = (fill % (name, name)) + addr(stride, off, hi)
    gen.kern(name, rep(body, 4), iters=200, pre=pre, vgpr=128)
    names.append(name)
b128 = "  ds_read_b128 v[{d}:{d1}], v12 offset:{o}"
b64 = "  ds_read_b64 v[{d}:{d1}], v12 offset:{o}"
K("al16", b128, 16, hi=512)
K("han2", b128, 2)
K("han4", b128, 4)
K("han8", b128, 8)
K("han4o", b128, 4, off=4)
K("s80", b128, 80)
K("b64al", b64, 8, hi=256, nreg=2)
K("b64h4", b64, 4, hi=8, nreg=2)
K("b64h2", b64, 2, hi=8, nreg=2)
K("r2b32", "  ds_read2_b32 v[{d}:{d1}], v12 offset0:0 offset1:1", 4, hi=8, nreg=2)
def D(name, instr, stride, off=0, hi=16):
    pre = (fill % (name, name)) + addr(stride, off, hi) + f"""
  {instr}
  s_waitcnt lgkmcnt(0)
  v_lshlrev_b32 v14, 4, v0
  global_store_dwordx4 v14, v[16:19], s[6:7]
  s_waitcnt vmcnt(0)
  s_endpgm
"""
    gen.kern(name, "  s_nop 0", iters=1, pre=pre, vgpr=128)
D("d_han2", "ds_read_b128 v[16:19], v12", 2)
D("d_han4", "ds_read_b128 v[16:19], v12", 4)
D("d_b64h2", "ds_read_b64 v[16:17], v12\n  ds_read_b64 v[18:19], v12 offset:8", 2)
D("d_tr", "ds_read_b64_tr_b16 v[16:17], v12\n  ds_read_b64_tr_b16 v[18:19], v12 offset:1024", 8, hi=256)
emit("t3.s")
open("t3.names","w").write(" ".join(names))
```
